```python
import torch

def _softmax(x, axis=-1):
    return torch.softmax(x, dim=axis)
def _gelu(x):
    return torch.nn.functional.gelu(x, approximate="tanh")
def _silu(x):
    return torch.nn.functional.silu(x)
def _sigmoid(x):
    return torch.sigmoid(x)
def _layernorm(x, axis=-1, eps=1e-5):
    m = x.mean(dim=axis, keepdim=True)
    v = x.var(dim=axis, keepdim=True, unbiased=False)
    return (x - m) / torch.sqrt(v + eps)
def _scatter_add(tgt, idx, src, axis=0):
    return tgt.clone().index_add_(axis, idx, src)
def _segment_sum(src, seg, n):
    out = torch.zeros((n,) + src.shape[1:], dtype=src.dtype)
    return out.index_add_(0, seg, src)
def _pad(x, pw):
    flat = tuple(v for pair in reversed(pw) for v in pair)
    return torch.nn.functional.pad(x, flat)

kernel_name = 'standalone__gqa_softmax__near_ridge'

def setup_inputs():

    _w = (lambda a: (lambda t: t.to(torch.bfloat16) if t.is_floating_point() else t)(torch.as_tensor(a)))
    B, Hq, Hkv, Sq, Sk, D = 16, 32, 32, 368, 512, 192
    return {
        "q": _w((lambda *s: torch.randn(*s, dtype=torch.bfloat16) * 0.8)(B, Hq, Sq, D)),
        "k": _w((lambda *s: torch.randn(*s, dtype=torch.bfloat16) * 0.8)(B, Hkv, Sk, D)),
        "v": _w((lambda *s: torch.randn(*s, dtype=torch.bfloat16) * 0.05)(B, Hkv, Sk, D)),
    }

def reference(q, k, v):
    B, Hq, Sq, D = q.shape
    Hkv = k.shape[1]
    rep = Hq // Hkv
    k = (lambda x, n, axis: torch.repeat_interleave(x, n, dim=axis))(k, rep, axis=1)
    v = (lambda x, n, axis: torch.repeat_interleave(x, n, dim=axis))(v, rep, axis=1)
    scale = D ** -0.5
    scores = torch.einsum("bhqd,bhkd->bhqk", q, k) * scale
    p = _softmax(scores, axis=-1)
    return torch.einsum("bhqk,bhkd->bhqd", p, v)
```

```python
import struct, sys, math

class Cfg:
    NK = 6
    NV = 7
    D = 5
    T_THRESH = 8.0
    q_iters = [1, 2, 3, 4, 5, 6, 7, 8, 9]
    nt_kv = False
    nt_q = False
    nt_o = False
    map_mode = 0
    pad4 = False

cfg = Cfg()
TILE = 12288
KRING = 0
OOB = 0x80000000

class I:
    __slots__ = ("text", "kind", "rd", "wr", "tag", "need", "srcc", "nops", "cost")
    def __init__(s, text, kind, rd=(), wr=(), tag=None, need=None, srcc=(), nops=1, cost=4):
        s.text = text; s.kind = kind; s.rd = frozenset(rd); s.wr = frozenset(wr)
        s.tag = tag; s.need = need; s.srcc = frozenset(srcc); s.nops = nops; s.cost = cost

def V(i): return "v%d" % i
def A(i): return "a%d" % i
def S(i): return "s%d" % i
def rng(p, lo, n): return ["%s%d" % (p, lo + k) for k in range(n)]
def R(p, lo, n): return "%s[%d:%d]" % (p, lo, lo + n - 1) if n > 1 else "%s%d" % (p, lo)

def vO(qt, dt): return (qt * 12 + dt) * 4
def vL(qt): return 144 + qt * 4
def vS(b, kt, qt): return 156 + b * 24 + (kt * 3 + qt) * 4
def vP(qt): return 204 + qt * 4
def vM(qt): return 216 + qt
VT = 220
VT1 = 219
vKA = [232, 233]; vKB = [234, 235]
vVA = [236, 237, 238, 239]; vVB = [240, 241, 242, 243]
vDK = [244, 245, 246]; vDV = [247, 248, 249]
vQO = 250
vX = 251
vX2 = 252
vX3 = 253
vX4 = 254
vX5 = 255
def aQ(qt, kk): return (qt * 6 + kk) * 4
def aQn(qt, kk): return 72 + (qt * 6 + kk) * 4
def aF(i): return 144 + (i % 8) * 4
aONES = 176

sQ_SRD, sK_SRD, sV_SRD, sO_SRD = 4, 8, 12, 16
sC = 20; sWOFF = 21; sKVC = 22; sKVN = 23
sOO = [24, 25, 26]; sQN = [27, 28, 29]; sCUR = [50, 51, 52]
sUNIT = 30; sT0 = 31; sT1 = 32; sT2 = 33
sODD = 34
sKS = list(range(36, 36 + 6)); sVS = list(range(42, 42 + 7))
sINV2 = 53; sROWN = 54; sWAVE = 55; sT3 = 56

def valu(text, rd, wr): return I(text, "valu", rd, wr)
def trans(text, rd, wr): return I(text, "trans", rd, wr, cost=8)
def salu(text, rd, wr): return I(text, "salu", rd, wr)
def nop(n): return I("s_nop %d" % (n - 1), "nop", nops=n, cost=4 * n)
def label(l): return I(l + ":", "label", nops=0, cost=0)
def raw(text, kind="other", rd=(), wr=()): return I(text, kind, rd, wr)

def mfma(d, a, b, c):
    dr = rng(d[0], d[1], 4); ar = rng(a[0], a[1], 4); br = rng(b[0], b[1], 4)
    if c is None:
        ct = "0"; cr = []
    else:
        ct = R(c[0], c[1], 4); cr = rng(c[0], c[1], 4)
    return I("v_mfma_f32_16x16x32_bf16 %s, %s, %s, %s" % (R(d[0], d[1], 4), R(a[0], a[1], 4), R(b[0], b[1], 4), ct),
             "mfma", ar + br + cr, dr, srcc=cr, cost=8)

def wait_vm(need): return I(None, "waitvm", need=need)
def wait_lgkm(need): return I(None, "waitlgkm", need=need)
def wait_all_lgkm(): return I("s_waitcnt lgkmcnt(0)", "waitlgkm0")
def wait_all_vm(): return I("s_waitcnt vmcnt(0)", "waitvm0")

def ds_b128(adst, vaddr, off, tag):
    return I("ds_read_b128 %s, %s offset:%d" % (R("a", adst, 4), V(vaddr), off), "ds", [V(vaddr)], rng("a", adst, 4), tag=tag)
def ds_tr(adst, vaddr, off, tag):
    return I("ds_read_b64_tr_b16 %s, %s offset:%d" % (R("a", adst, 2), V(vaddr), off), "ds", [V(vaddr)], rng("a", adst, 2), tag=tag)
def dma(vaddr, srd, soff, off, tag, nt=False):
    return I("buffer_load_dwordx4 %s, %s, %s offen offset:%d%s lds" % (V(vaddr), R("s", srd, 4), S(soff), off, " nt" if nt else ""),
             "dma", [V(vaddr), S(soff), "m0"] + rng("s", srd, 4), [], tag=tag)
def qload(adst, soff, off, tag):
    return I("buffer_load_dwordx4 %s, %s, %s, %s offen offset:%d%s" % (R("a", adst, 4), V(vQO), R("s", sQ_SRD, 4), S(soff), off, " nt" if cfg.nt_q else ""),
             "vload", [V(vQO), S(soff)] + rng("s", sQ_SRD, 4), rng("a", adst, 4), tag=tag)
def ostore(vsrc, soff, off, tag):
    return I("buffer_store_dwordx4 %s, %s, %s, %s offen offset:%d%s" % (R("v", vsrc, 4), V(vQO), R("s", sO_SRD, 4), S(soff), off, " nt" if cfg.nt_o else ""),
             "vstore", [V(vQO), S(soff)] + rng("s", sO_SRD, 4) + rng("v", vsrc, 4), [], tag=tag)

def f32bits(x): return struct.unpack("<I", struct.pack("<f", x))[0]

def tK(rel): return ("K", rel, 16)
def tV(rel): return ("V", rel, 16)
def tQ(rel): return ("Q", rel, 1)
def tF(rel): return ("F", rel, 16 * 24)

VRING = KRING + cfg.NK * TILE

def frag_reads(j, f):
    tag = tF(j * 24 + f)
    buf = aF(f)
    if f < 12:
        kk, kt = f >> 1, f & 1
        return [ds_b128(buf, vKA[kk & 1], kt * 6144 + (kk >> 1) * 128, tag)]
    dt = f - 12
    T, t = dt >> 1, dt & 1
    va = vVA[(T & 1) * 2 + t]
    return [ds_tr(buf, va, (T >> 1) * 128, tag), ds_tr(buf + 2, va, 6144 + (T >> 1) * 128, tag)]

def kv_soff(rel, dst):
    if rel < 16:
        return salu("s_add_u32 %s, %s, %d" % (S(dst), S(sKVC), rel * TILE), [S(sKVC)], [S(dst), "scc"])
    return salu("s_add_u32 %s, %s, %d" % (S(dst), S(sKVN), (rel - 16) * TILE), [S(sKVN)], [S(dst), "scc"])

def dma_group(krel, vrel):
    units = []
    if krel is not None:
        ks = sKS[krel % cfg.NK]
        pre = [kv_soff(krel, sT0), salu("s_add_u32 m0, %s, %s" % (S(ks), S(sWOFF)), [S(ks), S(sWOFF)], ["m0", "scc"])]
        for i in range(3):
            u = (pre + [nop(1)] if i == 0 else []) + [dma(vDK[i], sK_SRD, sT0, 1024 * i, tK(krel), cfg.nt_kv)]
            units.append(u)
    if vrel is not None:
        vs = sVS[vrel % cfg.NV]
        pre = [kv_soff(vrel, sT1), salu("s_add_u32 m0, %s, %s" % (S(vs), S(sWOFF)), [S(vs), S(sWOFF)], ["m0", "scc"])]
        for i in range(3):
            u = (pre + [nop(1)] if i == 0 else []) + [dma(vDV[i], sV_SRD, sT1, 1024 * i, tV(vrel), cfg.nt_kv)]
            units.append(u)
    return units

def kaddr_update(rel):
    ks = sKS[rel % cfg.NK]
    return [valu("v_add_u32 %s, %s, %s" % (V(vKA[e]), S(ks), V(vKB[e])), [S(ks), V(vKB[e])], [V(vKA[e])]) for e in range(2)]
def vaddr_update(rel):
    vs = sVS[rel % cfg.NV]
    return [valu("v_add_u32 %s, %s, %s" % (V(vVA[e]), S(vs), V(vVB[e])), [S(vs), V(vVB[e])], [V(vVA[e])]) for e in range(4)]

def exp_cvt_list(b):
    pairs = []
    for qt in range(3):
        for kt in range(2):
            for h in range(2):
                r0 = vS(b, kt, qt) + 2 * h
                pairs.append((r0, r0 + 1, vP(qt) + kt * 2 + h))
    return pairs

def softmax_normal(b):
    out = []
    xs = []
    for kt in range(2):
        for qt in range(3):
            for r in range(4):
                x = vS(b, kt, qt) + r
                out.append(valu("v_fma_f32 %s, %s, %s, -%s" % (V(x), V(x), S(sC), V(vM(qt))), [V(x), S(sC), V(vM(qt))], [V(x)]))
                xs.append(x)
    res = []
    n = 0
    first = True
    for i, ins in enumerate(out):
        res.append(ins)
        n += 1
        if first and n == 3:
            res.append(valu("v_max3_f32 %s, %s, %s, %s" % (V(vX), V(xs[0]), V(xs[1]), V(xs[2])), [V(xs[0]), V(xs[1]), V(xs[2])], [V(vX)]))
            first = False; n = 0
        elif not first and n == 2:
            res.append(valu("v_max3_f32 %s, %s, %s, %s" % (V(vX), V(vX), V(xs[i - 1]), V(xs[i])), [V(vX), V(xs[i - 1]), V(xs[i])], [V(vX)]))
            n = 0
    if n == 1:
        res.append(valu("v_max_f32 %s, %s, %s" % (V(vX), V(vX), V(xs[-1])), [V(vX), V(xs[-1])], [V(vX)]))
    res.append(valu("v_cmp_lt_f32 vcc, 0x%08x, %s" % (f32bits(cfg.T_THRESH), V(vX)), [V(vX)], ["vcc"]))
    return res

def rowmax_tile(b, qt, t, t2):
    xs = [vS(b, kt, qt) + r for kt in range(2) for r in range(4)]
    o = []
    o.append(valu("v_max3_f32 %s, %s, %s, %s" % (V(t), V(xs[0]), V(xs[1]), V(xs[2])), [V(x) for x in xs[:3]], [V(t)]))
    o.append(valu("v_max3_f32 %s, %s, %s, %s" % (V(t), V(t), V(xs[3]), V(xs[4])), [V(t), V(xs[3]), V(xs[4])], [V(t)]))
    o.append(valu("v_max3_f32 %s, %s, %s, %s" % (V(t), V(t), V(xs[5]), V(xs[6])), [V(t), V(xs[5]), V(xs[6])], [V(t)]))
    o.append(valu("v_max_f32 %s, %s, %s" % (V(t), V(t), V(xs[7])), [V(t), V(xs[7])], [V(t)]))
    for sw in ("v_permlane32_swap_b32", "v_permlane16_swap_b32"):
        o.append(valu("v_mov_b32 %s, %s" % (V(t2), V(t)), [V(t)], [V(t2)]))
        o.append(nop(2))
        o.append(I("%s %s, %s" % (sw, V(t), V(t2)), "permlane", [V(t), V(t2)], [V(t), V(t2)]))
        o.append(valu("v_max_f32 %s, %s, %s" % (V(t), V(t), V(t2)), [V(t), V(t2)], [V(t)]))
    return o

def softmax_init(b):
    o = []
    ts = [(vX, vX2), (vX3, vX4), (vX5, VT1)]
    parts = [rowmax_tile(b, qt, *ts[qt]) for qt in range(3)]
    n = len(parts[0])
    for i in range(n):
        for qt in range(3):
            ins = parts[qt][i]
            if ins.kind == "nop":
                continue
            o.append(ins)
    for qt in range(3):
        o.append(valu("v_mul_f32 %s, %s, %s" % (V(vM(qt)), S(sC), V(ts[qt][0])), [S(sC), V(ts[qt][0])], [V(vM(qt))]))
    for kt in range(2):
        for qt in range(3):
            for r in range(4):
                x = vS(b, kt, qt) + r
                o.append(valu("v_fma_f32 %s, %s, %s, -%s" % (V(x), V(x), S(sC), V(vM(qt))), [V(x), S(sC), V(vM(qt))], [V(x)]))
    return o

def q_copy():
    return [valu("v_accvgpr_mov_b32 %s, %s" % (A(i), A(72 + i)), [A(72 + i)], [A(i)]) for i in range(72)]

def epilogue(soffs):
    o = []
    inv = [vX, vX2, vX3]
    for qt in range(3):
        o.append(trans("v_rcp_f32 %s, %s" % (V(inv[qt]), V(vL(qt))), [V(vL(qt))], [V(inv[qt])]))
    o.append(nop(1))
    n = 0
    for qt in range(3):
        for T in range(6):
            a = vO(qt, 2 * T)
            for r in range(8):
                o.append(valu("v_mul_f32 %s, %s, %s" % (V(a + r), V(a + r), V(inv[qt])), [V(a + r), V(inv[qt])], [V(a + r)]))
            pk = VT
            for h in range(4):
                o.append(valu("v_cvt_pk_bf16_f32 %s, %s, %s" % (V(pk + h), V(a + 2 * h), V(a + 2 * h + 1)), [V(a + 2 * h), V(a + 2 * h + 1)], [V(pk + h)]))
            ob = VT + 4 + 4 * (n & 1)
            for h in range(4):
                o.append(valu("v_cndmask_b32 %s, %s, %s, %s" % (V(ob + h), V(pk + h), V(pk + (h ^ 2)), R("s", sODD, 2)),
                              [V(pk + h), V(pk + (h ^ 2)), S(sODD), S(sODD + 1)], [V(ob + h)]))
            o.append(ostore(ob, soffs[qt], T * 64, ("O", n, 18)))
            n += 1
    return o

def rare_path(name, b, back):
    o = [label(name), nop(8)]
    for qt in range(3):
        t, t2, al = vX, vX2, vX3
        o += rowmax_tile(b, qt, t, t2)
        o.append(valu("v_max_f32 %s, 0, %s" % (V(t), V(t)), [V(t)], [V(t)]))
        o.append(valu("v_add_f32 %s, %s, %s" % (V(vM(qt)), V(vM(qt)), V(t)), [V(vM(qt)), V(t)], [V(vM(qt))]))
        o.append(trans("v_exp_f32 %s, -%s" % (V(al), V(t)), [V(t)], [V(al)]))
        for kt in range(2):
            for r in range(4):
                x = vS(b, kt, qt) + r
                o.append(valu("v_sub_f32 %s, %s, %s" % (V(x), V(x), V(t)), [V(x), V(t)], [V(x)]))
        for r in list(range(vO(qt, 0), vO(qt, 0) + 48)) + list(range(vL(qt), vL(qt) + 4)):
            o.append(valu("v_mul_f32 %s, %s, %s" % (V(r), V(r), V(al)), [V(r), V(al)], [V(r)]))
    o.append(nop(2))
    o.append(raw("s_branch %s" % back, "branch"))
    return o

def fill_group(mf, fillers, pre):
    out = list(pre)
    if not mf:
        return out + list(fillers)
    total = sum(f.cost for f in fillers)
    per = total / len(mf)
    idx = 0; acc = 0
    for k, m in enumerate(mf):
        out.append(m)
        lim = per * (k + 1)
        while idx < len(fillers) and (k == len(mf) - 1 or acc + fillers[idx].cost / 2 <= lim):
            out.append(fillers[idx]); acc += fillers[idx].cost; idx += 1
    return out

def iteration(j, first=False, last=False):
    D = cfg.D
    sb_cur = j & 1
    sb_nxt = (j + 1) & 1
    init = (j == 15)
    fill = [[] for _ in range(24)]
    pre = [[] for _ in range(24)]
    onesfill = []
    for g in range(24):
        f = g + D
        if f < 24:
            if f < 12 and last: continue
            if f >= 12 and first: continue
            fill[g] += frag_reads(j, f)
        else:
            if last: continue
            fill[g] += frag_reads(j + 1, f - 24)
    for g in range(24):
        if g < 12 and last: continue
        if g >= 12 and first: continue
        pre[g].append(wait_lgkm([tF(j * 24 + g)]))
    if not first:
        pairs = exp_cvt_list(sb_cur)
        ex = []
        for p, (r0, r1, dst) in enumerate(pairs):
            ex.append([trans("v_exp_f32 %s, %s" % (V(r0), V(r0)), [V(r0)], [V(r0)]),
                       trans("v_exp_f32 %s, %s" % (V(r1), V(r1)), [V(r1)], [V(r1)])])
        cv = [valu("v_cvt_pk_bf16_f32 %s, %s, %s" % (V(dst), V(r0), V(r1)), [V(r0), V(r1)], [V(dst)]) for (r0, r1, dst) in pairs]
        for g in range(12):
            lst = list(ex[g])
            if g >= 1: lst.append(cv[g - 1])
            fill[g] = lst + fill[g]
        onesfill = [cv[11], nop(1)]
    if not last:
        fill[13] += kaddr_update(j + 2)
    if not last:
        sm = softmax_init(sb_nxt) if init else softmax_normal(sb_nxt)
        g0, g1 = 12, 21 if not init else 23
        ng = g1 - g0 + 1
        per = math.ceil(len(sm) / ng)
        k = 0
        for g in range(g0, g1 + 1):
            fill[g] = sm[k:k + per] + fill[g]
            k += per
        assert k >= len(sm)
    if first:
        pre[12] = [nop(8)] + pre[12]
    gb = 24 - D - 1
    if not last:
        pre[gb] = [wait_vm([tK(j + 2), tV(j + 1)]), raw("s_barrier", "barrier")] + pre[gb]
        units = dma_group(j + 2 + cfg.NK - 1, j + 2 + cfg.NV - 3)
        for k, u in enumerate(units):
            g = min(gb + k, 23)
            fill[g] += u
    if not last:
        va = vaddr_update(j + 1)
        fill[20] += va[:2]; fill[21] += va[2:]
    if (not first) and j in cfg.q_iters:
        idx = cfg.q_iters.index(j)
        for h in range(2):
            n = idx * 2 + h
            qt, kk = n // 6, n % 6
            fill[2 + 4 * h] += [qload(aQn(qt, kk), sQN[qt], kk * 64, tQ(1))]
    if init and not last:
        qc = q_copy()
        pre[0] = [wait_vm([tQ(1)])] + pre[0]
        for g in range(24):
            fill[g] += qc[g * 3:(g + 1) * 3]
    out = []
    for g in range(24):
        mf = []
        if g < 12 and not last:
            kk, kt = g >> 1, g & 1
            for qt in range(3):
                q = aQn(qt, kk) if init else aQ(qt, kk)
                d = ("v", vS(sb_nxt, kt, qt))
                mf.append(mfma(d, ("a", aF(g)), ("a", q), None if kk == 0 else d))
        if g >= 12 and not first:
            dt = g - 12
            for qt in range(3):
                d = ("v", vO(qt, dt))
                mf.append(mfma(d, ("a", aF(g)), ("v", vP(qt)), None if j == 0 else d))
        if g == 12 and not first:
            om = []
            for qt in range(3):
                d = ("v", vL(qt))
                om.append(mfma(d, ("a", aONES), ("v", vP(qt)), None if j == 0 else d))
            out += onesfill + fill_group(om, [], [])
        out += fill_group(mf, fill[g], pre[g])
    return out

def rotate_tables():
    o = []
    def rot(tab, sh):
        n = len(tab)
        seen = [False] * n
        res = []
        for st in range(n):
            if seen[st]: continue
            cyc = []
            i = st
            while not seen[i]:
                seen[i] = True; cyc.append(i); i = (i + sh) % n
            if len(cyc) == 1: continue
            res.append(salu("s_mov_b32 %s, %s" % (S(sT2), S(tab[cyc[0]])), [S(tab[cyc[0]])], [S(sT2)]))
            for a, b_ in zip(cyc[:-1], cyc[1:]):
                res.append(salu("s_mov_b32 %s, %s" % (S(tab[a]), S(tab[b_])), [S(tab[b_])], [S(tab[a])]))
            res.append(salu("s_mov_b32 %s, %s" % (S(tab[cyc[-1]]), S(sT2)), [S(sT2)], [S(tab[cyc[-1]])]))
        return res
    o += rot(sKS[:cfg.NK], 16 % cfg.NK)
    o += rot(sVS[:cfg.NV], 16 % cfg.NV)
    return o

def unit_advance():
    o = rotate_tables()
    for qt in range(3):
        o.append(salu("s_mov_b32 %s, %s" % (S(sOO[qt]), S(sCUR[qt])), [S(sCUR[qt])], [S(sOO[qt])]))
        o.append(salu("s_mov_b32 %s, %s" % (S(sCUR[qt]), S(sQN[qt])), [S(sQN[qt])], [S(sCUR[qt])]))
    o.append(salu("s_add_u32 %s, %s, 1" % (S(sUNIT), S(sUNIT)), [S(sUNIT)], [S(sUNIT), "scc"]))
    o.append(salu("s_mov_b32 %s, %s" % (S(sKVC), S(sKVN)), [S(sKVN)], [S(sKVC)]))
    o += next_unit_setup()
    return o

HEAD_STEP = None
def next_unit_setup():
    o = []
    o.append(salu("s_add_u32 %s, %s, %d" % (S(sROWN), S(sROWN), 141312 * HEAD_STEP), [S(sROWN)], [S(sROWN), "scc"]))
    o.append(salu("s_add_u32 %s, %s, %d" % (S(sT2), S(sKVC), 196608 * HEAD_STEP), [S(sKVC)], [S(sT2), "scc"]))
    o.append(salu("s_cmp_lt_u32 %s, 3" % S(sUNIT), [S(sUNIT)], ["scc"]))
    o.append(salu("s_cselect_b32 %s, %s, 0x%x" % (S(sKVN), S(sT2), OOB), [S(sT2), "scc"], [S(sKVN)]))
    o.append(salu("s_cselect_b32 %s, %s, 0x%x" % (S(sQN[0]), S(sROWN), OOB), [S(sROWN), "scc"], [S(sQN[0])]))
    o.append(salu("s_add_u32 %s, %s, 6144" % (S(sQN[1]), S(sQN[0])), [S(sQN[0])], [S(sQN[1]), "scc"]))
    o.append(salu("s_add_u32 %s, %s, 12288" % (S(sQN[2]), S(sQN[0])), [S(sQN[0])], [S(sQN[2]), "scc"]))
    o.append(salu("s_or_b32 %s, %s, %s" % (S(sQN[2]), S(sQN[2]), S(sINV2)), [S(sQN[2]), S(sINV2)], [S(sQN[2]), "scc"]))
    return o

def prologue():
    global HEAD_STEP
    o = []
    def sa(t, rd=(), wr=()): o.append(salu(t, rd, wr))
    def va(t, rd=(), wr=()): o.append(valu(t, rd, wr))
    sa("s_cmp_ge_u32 s2, 256", ["s2"], ["scc"])
    o.append(raw("s_cbranch_scc1 L_exit", "branch"))
    o.append(raw("s_load_dwordx4 s[60:63], s[0:1], 0", "smem", [], rng("s", 60, 4)))
    o.append(raw("s_load_dwordx4 s[64:67], s[0:1], 16", "smem", [], rng("s", 64, 4)))
    t = VT
    va("v_and_b32 v%d, 63, v0" % t, ["v0"], [V(t)])
    va("v_lshrrev_b32 v%d, 6, v0" % (t + 1), ["v0"], [V(t + 1)])
    o.append(nop(1))
    o.append(I("v_readfirstlane_b32 %s, v%d" % (S(sWAVE), t + 1), "valu", [V(t + 1)], [S(sWAVE)]))
    va("v_lshrrev_b32 v%d, 4, v%d" % (t + 2, t), [V(t)], [V(t + 2)])
    va("v_and_b32 v%d, 15, v%d" % (t + 3, t), [V(t)], [V(t + 3)])
    va("v_mul_u32_u24 v%d, 384, v%d" % (t + 4, t + 3), [V(t + 3)], [V(t + 4)])
    va("v_lshl_add_u32 %s, v%d, 4, v%d" % (V(vQO), t + 2, t + 4), [V(t + 2), V(t + 4)], [V(vQO)])
    va("v_lshrrev_b32 v%d, 1, v%d" % (t + 5, t + 3), [V(t + 3)], [V(t + 5)])
    va("v_xor_b32 v%d, v%d, v%d" % (t + 5, t + 5, t + 2), [V(t + 5), V(t + 2)], [V(t + 5)])
    va("v_lshl_add_u32 %s, v%d, 4, v%d" % (V(vKB[0]), t + 5, t + 4), [V(t + 5), V(t + 4)], [V(vKB[0])])
    va("v_xor_b32 %s, 64, %s" % (V(vKB[1]), V(vKB[0])), [V(vKB[0])], [V(vKB[1])])
    va("v_bfe_u32 v%d, v%d, 2, 4" % (t + 5, t), [V(t)], [V(t + 5)])
    va("v_mul_u32_u24 v%d, 384, v%d" % (t + 5, t + 5), [V(t + 5)], [V(t + 5)])
    va("v_bfe_u32 v%d, v%d, 3, 1" % (t + 6, t), [V(t)], [V(t + 6)])
    va("v_lshlrev_b32 v%d, 2, v%d" % (t + 6, t + 6), [V(t + 6)], [V(t + 6)])
    va("v_bfe_u32 v%d, v%d, 4, 1" % (t + 7, t), [V(t)], [V(t + 7)])
    va("v_or_b32 v%d, v%d, v%d" % (t + 6, t + 6, t + 7), [V(t + 6), V(t + 7)], [V(t + 6)])
    va("v_and_b32 v%d, 3, v%d" % (t + 8, t), [V(t)], [V(t + 8)])
    va("v_xor_b32 v%d, v%d, v%d" % (t + 6, t + 6, t + 8), [V(t + 6), V(t + 8)], [V(t + 6)])
    va("v_lshl_add_u32 v%d, v%d, 4, v%d" % (t + 5, t + 6, t + 5), [V(t + 6), V(t + 5)], [V(t + 5)])
    va("v_and_b32 v%d, 1, v%d" % (t + 8, t), [V(t)], [V(t + 8)])
    va("v_lshl_add_u32 %s, v%d, 3, v%d" % (V(vVB[0]), t + 8, t + 5), [V(t + 8), V(t + 5)], [V(vVB[0])])
    va("v_xor_b32 %s, 8, %s" % (V(vVB[1]), V(vVB[0])), [V(vVB[0])], [V(vVB[1])])
    va("v_xor_b32 %s, 64, %s" % (V(vVB[2]), V(vVB[0])), [V(vVB[0])], [V(vVB[2])])
    va("v_xor_b32 %s, 72, %s" % (V(vVB[3]), V(vVB[0])), [V(vVB[0])], [V(vVB[3])])
    o.append(I("v_cmp_eq_u32 %s, 1, v%d" % (R("s", sODD, 2), t + 7), "valu", [V(t + 7)], [S(sODD), S(sODD + 1)]))
    sa("s_mul_i32 %s, %s, 3072" % (S(sWOFF), S(sWAVE)), [S(sWAVE)], [S(sWOFF)])
    sa("s_and_b32 %s, %s, 1" % (S(sT3), S(sWAVE)), [S(sWAVE)], [S(sT3), "scc"])
    sa("s_lshl_b32 %s, %s, 2" % (S(sT3), S(sT3)), [S(sT3)], [S(sT3), "scc"])
    va("v_lshrrev_b32 v%d, 3, v%d" % (t + 5, t), [V(t)], [V(t + 5)])
    va("v_and_b32 v%d, 7, v%d" % (t + 6, t), [V(t)], [V(t + 6)])
    va("v_lshlrev_b32 v%d, 7, v%d" % (t + 9, t + 5), [V(t + 5)], [V(t + 9)])
    va("v_add_u32 v%d, %s, v%d" % (t + 9, S(sWOFF), t + 9), [S(sWOFF), V(t + 9)], [V(t + 9)])
    for i in range(3):
        va("v_add_u32 v%d, %d, v%d" % (t + 7, 8 * i, t + 5), [V(t + 5)], [V(t + 7)])
        va("v_mul_u32_u24 v%d, 43, v%d" % (t + 7, t + 7), [V(t + 7)], [V(t + 7)])
        va("v_lshrrev_b32 v%d, 7, v%d" % (t + 7, t + 7), [V(t + 7)], [V(t + 7)])
        va("v_lshrrev_b32 v%d, 1, v%d" % (t + 8, t + 7), [V(t + 7)], [V(t + 8)])
        va("v_add_u32 v%d, %s, v%d" % (t + 8, S(sT3), t + 8), [S(sT3), V(t + 8)], [V(t + 8)])
        va("v_xor_b32 v%d, v%d, v%d" % (t + 8, t + 8, t + 6), [V(t + 8), V(t + 6)], [V(t + 8)])
        va("v_lshl_add_u32 %s, v%d, 4, v%d" % (V(vDK[i]), t + 8, t + 9), [V(t + 8), V(t + 9)], [V(vDK[i])])
        va("v_bfe_u32 v%d, v%d, 1, 1" % (t + 8, t + 7), [V(t + 7)], [V(t + 8)])
        va("v_lshlrev_b32 v%d, 2, v%d" % (t + 8, t + 8), [V(t + 8)], [V(t + 8)])
        va("v_bfe_u32 v%d, v%d, 2, 1" % (t + 10, t + 7), [V(t + 7)], [V(t + 10)])
        va("v_or_b32 v%d, v%d, v%d" % (t + 8, t + 8, t + 10), [V(t + 8), V(t + 10)], [V(t + 8)])
        va("v_xor_b32 v%d, v%d, v%d" % (t + 8, t + 8, t + 6), [V(t + 8), V(t + 6)], [V(t + 8)])
        va("v_lshl_add_u32 %s, v%d, 4, v%d" % (V(vDV[i]), t + 8, t + 9), [V(t + 8), V(t + 9)], [V(vDV[i])])
    sa("s_and_b32 s57, s2, 7", ["s2"], ["s57", "scc"])
    sa("s_lshr_b32 s58, s2, 3", ["s2"], ["s58", "scc"])
    sa("s_and_b32 s59, s58, 1", ["s58"], ["s59", "scc"])
    sa("s_lshr_b32 s58, s58, 1", ["s58"], ["s58", "scc"])
    sa("s_lshl_b32 s57, s57, 4", ["s57"], ["s57", "scc"])
    sa("s_add_u32 s57, s57, s58", ["s57", "s58"], ["s57", "scc"])
    if cfg.map_mode == 0:
        HEAD_STEP = 1
        sa("s_lshl_b32 s57, s57, 2", ["s57"], ["s57", "scc"])
    else:
        HEAD_STEP = 128
    sa("s_mul_i32 %s, s57, 196608" % S(sKVC), ["s57"], [S(sKVC)])
    sa("s_mul_i32 %s, s57, 141312" % S(sROWN), ["s57"], [S(sROWN)])
    sa("s_mul_i32 s58, s59, 73728", ["s59"], ["s58"])
    sa("s_add_u32 %s, %s, s58" % (S(sROWN), S(sROWN)), [S(sROWN), "s58"], [S(sROWN), "scc"])
    sa("s_mul_i32 s58, %s, 18432" % S(sWAVE), [S(sWAVE)], ["s58"])
    sa("s_add_u32 %s, %s, s58" % (S(sROWN), S(sROWN)), [S(sROWN), "s58"], [S(sROWN), "scc"])
    sa("s_lshl_b32 s58, s59, 2", ["s59"], ["s58", "scc"])
    sa("s_add_u32 s58, s58, %s" % S(sWAVE), ["s58", S(sWAVE)], ["s58", "scc"])
    sa("s_cmp_eq_u32 s58, 7", ["s58"], ["scc"])
    sa("s_cselect_b32 %s, 0x%x, 0" % (S(sINV2), OOB), ["scc"], [S(sINV2)])
    sa("s_mov_b32 %s, %s" % (S(sCUR[0]), S(sROWN)), [S(sROWN)], [S(sCUR[0])])
    sa("s_add_u32 %s, %s, 6144" % (S(sCUR[1]), S(sROWN)), [S(sROWN)], [S(sCUR[1]), "scc"])
    sa("s_add_u32 %s, %s, 12288" % (S(sCUR[2]), S(sROWN)), [S(sROWN)], [S(sCUR[2]), "scc"])
    sa("s_or_b32 %s, %s, %s" % (S(sCUR[2]), S(sCUR[2]), S(sINV2)), [S(sCUR[2]), S(sINV2)], [S(sCUR[2]), "scc"])
    for qt in range(3):
        sa("s_mov_b32 %s, 0x%x" % (S(sOO[qt]), OOB), [], [S(sOO[qt])])
    sa("s_mov_b32 %s, 0" % S(sUNIT), [], [S(sUNIT)])
    c = (192.0 ** -0.5) * math.log2(math.e)
    sa("s_mov_b32 %s, 0x%08x" % (S(sC), f32bits(c)), [], [S(sC)])
    for i in range(cfg.NK):
        sa("s_mov_b32 %s, %d" % (S(sKS[i]), KRING + ((i - 16) % cfg.NK) * TILE), [], [S(sKS[i])])
    for i in range(cfg.NV):
        sa("s_mov_b32 %s, %d" % (S(sVS[i]), VRING + ((i - 16) % cfg.NV) * TILE), [], [S(sVS[i])])
    va("v_mov_b32 v%d, 0x3f803f80" % t, [], [V(t)])
    for r in range(4):
        va("v_accvgpr_write_b32 %s, v%d" % (A(aONES + r), t), [V(t)], [A(aONES + r)])
    o.append(wait_all_lgkm())
    for (srd, lo, nbytes) in ((sQ_SRD, 60, 72351744), (sK_SRD, 62, 100663296), (sV_SRD, 64, 100663296), (sO_SRD, 66, 72351744)):
        sa("s_mov_b32 %s, s%d" % (S(srd), lo), ["s%d" % lo], [S(srd)])
        sa("s_and_b32 %s, s%d, 0xffff" % (S(srd + 1), lo + 1), ["s%d" % (lo + 1)], [S(srd + 1), "scc"])
        sa("s_mov_b32 %s, %d" % (S(srd + 2), nbytes), [], [S(srd + 2)])
        sa("s_mov_b32 %s, 0x00020000" % S(srd + 3), [], [S(srd + 3)])
    sa("s_mov_b32 %s, %s" % (S(sKVN), S(sKVC)), [S(sKVC)], [S(sKVN)])
    for n in range(18):
        qt, kk = n // 6, n % 6
        o.append(qload(aQn(qt, kk), sCUR[qt], kk * 64, tQ(1)))
    bmin = -(cfg.NK - 1)
    for b in range(bmin, 0):
        k = b + cfg.NK - 1; v = b + cfg.NV - 3
        for u in dma_group(k + 16 if k >= 0 else None, v + 16 if v >= 0 else None):
            o += u
    o.append(wait_vm([tK(16), tQ(1)]))
    o.append(raw("s_barrier", "barrier"))
    for u in dma_group(cfg.NK - 1 + 16, cfg.NV - 3 + 16):
        o += u
    o += kaddr_update(16)
    for f in range(cfg.D):
        o += frag_reads(15, f)
    return o

def build():
    P = prologue()
    it_first = iteration(15, first=True)
    adv = unit_advance()
    U1 = [label("L_unit")]
    rares = []
    for j in range(15):
        if j == 0:
            U1 += epilogue(sOO)
        U1 += iteration(j)
        U1.append(raw("s_cbranch_vccnz L_rare%d" % j, "branch", ["vcc"]))
        U1.append(label("L_back%d" % j))
        rares += rare_path("L_rare%d" % j, (j + 1) & 1, "L_back%d" % j)
    U1.append(salu("s_cmp_eq_u32 %s, 3" % S(sUNIT), [S(sUNIT)], ["scc"]))
    U1.append(raw("s_cbranch_scc1 L_tail", "branch", ["scc"]))
    U2 = iteration(15) + adv + [raw("s_branch L_unit", "branch")]
    T = [label("L_tail"), wait_all_lgkm()] + iteration(15, last=True) + [nop(8)] + epilogue(sCUR) + [label("L_exit"), raw("s_endpgm", "end")]
    padv = rotate_tables()
    padv.append(salu("s_mov_b32 %s, %s" % (S(sKVC), S(sKVN)), [S(sKVN)], [S(sKVC)]))
    padv += next_unit_setup()
    PRO = P + it_first + padv
    trace = [(PRO, -1)]
    for u in range(4):
        trace.append((U1, u))
        trace.append((U2, u) if u < 3 else (T, u))
    return PRO, U1, U2, T, rares, trace

def absT(tag, u): return (tag[0], tag[1] + tag[2] * u)

def resolve_waits(trace):
    res = {}
    vm = []
    lg = []
    for seg, u in trace:
        for ins in seg:
            if ins.kind in ("dma", "vload", "vstore"):
                vm.append(absT(ins.tag, u))
            elif ins.kind == "ds":
                lg.append(absT(ins.tag, u))
            elif ins.kind in ("waitvm", "waitlgkm"):
                lst = vm if ins.kind == "waitvm" else lg
                need = set(absT(t, u) for t in ins.need)
                last = -1
                for idx in range(len(lst) - 1, -1, -1):
                    if lst[idx] in need:
                        last = idx; break
                if last < 0:
                    n = 63
                else:
                    n = len(lst) - 1 - last
                mx = 63 if ins.kind == "waitvm" else 15
                n = min(n, mx)
                res[id(ins)] = min(res.get(id(ins), 99), n)
    return res

def check(trace, waits, name="main"):
    errs = 0
    pos = 0
    last_valu_w = {}
    last_trans_w = {}
    last_mfma_w = {}
    last_mfma_c = {}
    last_salu_m0 = -99
    last_store_data = {}
    valu_sgpr_w = {}
    out_vm = []
    out_lg = []
    def err(msg, ins):
        nonlocal errs
        errs += 1
        if errs < 30: print("HAZARD[%s]: %s :: %s" % (name, msg, ins.text), file=sys.stderr)
    for seg, u in trace:
        for ins in seg:
            k = ins.kind
            if k == "label": continue
            if k == "waitvm":
                n = waits[id(ins)]; out_vm = out_vm[len(out_vm) - n:] if n < len(out_vm) else out_vm
            elif k == "waitvm0": out_vm = []
            elif k == "waitlgkm":
                n = waits[id(ins)]; out_lg = out_lg[len(out_lg) - n:] if n < len(out_lg) else out_lg
            elif k == "waitlgkm0": out_lg = []
            touched = ins.rd | ins.wr
            for w in out_vm + out_lg:
                if w & touched: err("touches pending load dest %s" % sorted(w & touched), ins)
            isv = k in ("valu", "trans", "permlane")
            def dist(p): return pos - p - 1
            if k == "mfma":
                for r in ins.rd:
                    if r in last_valu_w and dist(last_valu_w[r]) < 2: err("valu->mfma %s" % r, ins)
                    if r in last_mfma_w:
                        p, ds_ = last_mfma_w[r]
                        if r in ins.srcc:
                            if ds_ != ins.srcc and dist(p) < 6: err("mfma D->C overlap %s" % r, ins)
                        elif dist(p) < 8: err("mfma D->AB %s" % r, ins)
                for r in ins.wr:
                    if r in last_mfma_w and not ins.srcc:
                        p, ds_ = last_mfma_w[r]
                        if dist(p) < 8: err("mfma WAW %s" % r, ins)
                    if r in last_valu_w and dist(last_valu_w[r]) < 2: err("valu->mfma WAW %s" % r, ins)
            else:
                regs = touched if (isv or k in ("ds", "vload")) else ins.rd
                for r in regs:
                    if r in last_mfma_w and dist(last_mfma_w[r][0]) < 8: err("mfma D->%s %s" % (k, r), ins)
                if isv:
                    for r in ins.wr:
                        if r in last_mfma_c and dist(last_mfma_c[r]) < 3: err("mfma C WAR %s" % r, ins)
                        if r in last_store_data and dist(last_store_data[r]) < 2: err("store data WAR %s" % r, ins)
                    if k != "trans":
                        for r in ins.rd:
                            if r in last_trans_w and dist(last_trans_w[r]) < 1: err("trans->valu %s" % r, ins)
                    for r in ins.rd:
                        if r in valu_sgpr_w and dist(valu_sgpr_w[r]) < 2: err("valu sgpr->valu %s" % r, ins)
                    if k == "permlane":
                        for r in ins.rd:
                            if r in last_valu_w and dist(last_valu_w[r]) < 2: err("valu->permlane %s" % r, ins)
                    if "readfirstlane" in ins.text:
                        for r in ins.rd:
                            if r in last_valu_w and dist(last_valu_w[r]) < 1: err("valu->readfirstlane %s" % r, ins)
                if k in ("dma", "vload", "vstore"):
                    for r in ins.rd:
                        if r in valu_sgpr_w and dist(valu_sgpr_w[r]) < 5: err("valu sgpr->vmem %s" % r, ins)
                    if k == "dma" and dist(last_salu_m0) < 1: err("m0->dma", ins)
                if k == "salu":
                    for r in ins.rd:
                        if r in valu_sgpr_w and dist(valu_sgpr_w[r]) < 2: err("valu sgpr->salu %s (pad)" % r, ins)
            if isv:
                for r in ins.wr:
                    if r[0] in "va" and r != "vcc":
                        last_valu_w[r] = pos
                        if k == "trans": last_trans_w[r] = pos
                        else: last_trans_w.pop(r, None)
                    else:
                        valu_sgpr_w[r] = pos
                    last_mfma_w.pop(r, None)
            elif k == "mfma":
                for r in ins.wr:
                    last_mfma_w[r] = (pos, ins.wr); last_valu_w.pop(r, None)
                for r in ins.srcc: last_mfma_c[r] = pos
            elif k == "salu":
                if "m0" in ins.wr: last_salu_m0 = pos
                for r in ins.wr: valu_sgpr_w.pop(r, None)
            if k == "vstore":
                for r in ins.rd:
                    if r[0] == "v" and r != V(vQO): last_store_data[r] = pos
            if k in ("dma", "vstore"): out_vm.append(frozenset())
            if k == "vload": out_vm.append(ins.wr)
            if k == "ds": out_lg.append(ins.wr)
            pos += ins.nops
    return errs

def render(seg, waits):
    out = []
    for ins in seg:
        if ins.kind == "waitvm": out.append("    s_waitcnt vmcnt(%d)" % waits[id(ins)])
        elif ins.kind == "waitlgkm": out.append("    s_waitcnt lgkmcnt(%d)" % waits[id(ins)])
        elif ins.kind == "label": out.append(ins.text)
        else: out.append("    " + ins.text)
    return out

HEADER = """; GQA softmax attention, B=16 H=32 Sq=368 Sk=512 D=192 (bf16). Generated by wk/gen.py
; persistent: 256 WGs x 4 waves; WG = half (192 q rows) of 4 heads; K/V via LDS-DMA rings.
; @launch grid=(256,1,1) block=(256,1,1) lds=%d
.amdgcn_target "amdgcn-amd-amdhsa--gfx950"
.text
.globl standalone__gqa_softmax__near_ridge_kernel
.p2align 8
.type standalone__gqa_softmax__near_ridge_kernel,@function
standalone__gqa_softmax__near_ridge_kernel:
"""
FOOTER = """
.section .rodata,"a"
.p2align 6
.amdhsa_kernel standalone__gqa_softmax__near_ridge_kernel
  .amdhsa_next_free_vgpr 512
  .amdhsa_next_free_sgpr 102
  .amdhsa_accum_offset 256
  .amdhsa_group_segment_fixed_size 0
  .amdhsa_kernarg_size 48
  .amdhsa_user_sgpr_count 2
  .amdhsa_user_sgpr_kernarg_segment_ptr 1
  .amdhsa_system_sgpr_workgroup_id_x 1
.end_amdhsa_kernel
"""

def generate(path):
    PRO, U1, U2, T, rares, trace = build()
    waits = resolve_waits(trace)
    e = check(trace, waits)
    e += check([(rares, 0)], waits, "rare")
    lines = [HEADER % ((cfg.NK + cfg.NV) * TILE)]
    if cfg.pad4: lines.append("    s_nop 0")
    for seg in (PRO, U1, U2, T, rares):
        lines += render(seg, waits)
    lines.append(FOOTER)
    open(path, "w").write("\n".join(lines))
    n = sum(1 for seg in (PRO, U1, U2, T, rares) for i in seg if i.kind != "label")
    cyc = sum(i.cost for i in U1 + U2 if i.kind != "label")
    print("wrote %s: %d instrs, hazards=%d, est issue cycles/unit=%d" % (path, n, e, cyc))
    return e

if __name__ == "__main__":
    out = sys.argv[1] if len(sys.argv) > 1 else "standalone__gqa_softmax__near_ridge.s"
    for a in sys.argv[2:]:
        k, v = a.split("=")
        setattr(cfg, k, eval(v))
    VRING = KRING + cfg.NK * TILE
    sys.exit(1 if generate(out) else 0)
```
